```python
import torch

def _softmax(x, axis=-1):
    return torch.softmax(x, dim=axis)
def _gelu(x):
    return torch.nn.functional.gelu(x, approximate="tanh")
def _silu(x):
    return torch.nn.functional.silu(x)
def _sigmoid(x):
    return torch.sigmoid(x)
def _layernorm(x, axis=-1, eps=1e-5):
    m = x.mean(dim=axis, keepdim=True)
    v = x.var(dim=axis, keepdim=True, unbiased=False)
    return (x - m) / torch.sqrt(v + eps)
def _scatter_add(tgt, idx, src, axis=0):
    return tgt.clone().index_add_(axis, idx, src)
def _segment_sum(src, seg, n):
    out = torch.zeros((n,) + src.shape[1:], dtype=src.dtype)
    return out.index_add_(0, seg, src)
def _pad(x, pw):
    flat = tuple(v for pair in reversed(pw) for v in pair)
    return torch.nn.functional.pad(x, flat)

kernel_name = 'standalone__mha_block_cached__near_ridge'

def setup_inputs():

    _w = (lambda a: (lambda t: t.to(torch.bfloat16) if t.is_floating_point() else t)(torch.as_tensor(a)))
    B, Sq, D = 16, 48, 640
    H, Sk, Dh = 32, 48, 192
    return {
        "x": _w((lambda *s: torch.randn(*s, dtype=torch.bfloat16) * 0.8)(B, Sq, D)),
        "k_cache": _w((lambda *s: torch.randn(*s, dtype=torch.bfloat16) * 0.8)(B, H, Sk, Dh)),
        "v_cache": _w((lambda *s: torch.randn(*s, dtype=torch.bfloat16) * 0.05)(B, H, Sk, Dh)),
        "wq": _w((lambda *s: torch.randn(*s, dtype=torch.bfloat16) * 0.8)(D, H * Dh) * (D ** -0.5)),
        "wo": _w((lambda *s: torch.randn(*s, dtype=torch.bfloat16) * 0.05)(H * Dh, D) * ((H * Dh) ** -0.5)),
    }

def reference(x, k_cache, v_cache, wq, wo):
    B, Sq, D = x.shape
    H, Dh = 32, 192
    q = (lambda x, *d: x.permute(*d))((x @ wq).reshape(B, Sq, H, Dh), 0, 2, 1, 3)
    scores = torch.einsum("bhqd,bhkd->bhqk", q, k_cache) * (Dh ** -0.5)
    p = _softmax(scores, axis=-1)
    o = torch.einsum("bhqk,bhkd->bhqd", p, v_cache)
    return (lambda x, *d: x.permute(*d))(o, 0, 2, 1, 3).reshape(B, Sq, H * Dh) @ wo
```

```python
import re

TRANS = ('v_exp_f32','v_log_f32','v_rcp_f32','v_rsq_f32','v_sqrt_f32','v_sin_f32','v_cos_f32','v_rcp_iflag_f32')

def _regs(tok):
    tok = tok.strip()
    neg = tok.startswith('-')
    if neg: tok = tok[1:]
    m = re.fullmatch(r'abs\((.*)\)', tok)
    if m: tok = m.group(1)
    m = re.fullmatch(r'\|(.*)\|', tok)
    if m: tok = m.group(1)
    m = re.fullmatch(r'([vas])(\d+)', tok)
    if m: return [(m.group(1), int(m.group(2)))]
    m = re.fullmatch(r'([vas])\[(\d+):(\d+)\]', tok)
    if m: return [(m.group(1), i) for i in range(int(m.group(2)), int(m.group(3))+1)]
    if tok in ('vcc',): return [('s','vcc_lo'),('s','vcc_hi')]
    if tok in ('vcc_lo','vcc_hi'): return [('s',tok)]
    if tok == 'exec': return [('x','exec')]
    if tok in ('exec_lo','exec_hi'): return [('x','exec')]
    if tok == 'm0': return [('m','m0')]
    return []

class Ins:
    __slots__ = ('text','op','dst','src','kind','passes','srcc','srcab','label','target','nops','isbranch','uncond','storedata','lds_dma','sgpr_src','dpp')
    def __init__(self, text):
        self.text = text
        self.label = None; self.target = None; self.nops = 0
        self.dst = []; self.src = []; self.kind = 'other'; self.passes = 0
        self.srcc = []; self.srcab = []; self.isbranch = False; self.uncond = False
        self.storedata = []; self.lds_dma = False; self.dpp = False
        t = text.split(';')[0].strip()
        if t.endswith(':'):
            self.label = t[:-1]; self.kind = 'label'; self.op = ''
            return
        if t.startswith('.') or not t:
            self.kind = 'directive'; self.op = ''
            return
        parts = t.split(None, 1)
        op = parts[0]; self.op = op
        rest = parts[1] if len(parts) > 1 else ''
        ops = [o.strip() for o in re.split(r',(?![^\[]*\])', rest)] if rest else []
        mods = []
        if ops:
            sp = ops[-1].split()
            ops[-1] = sp[0] if sp else ''
            mods = sp[1:]
        base = re.sub(r'_(e32|e64|dpp|sdwa)$', '', op)
        if 'row_' in rest or 'quad_perm' in rest or 'wave_' in rest or op.endswith('_dpp'):
            self.dpp = True
        if op.startswith('v_mfma'):
            self.kind = 'mfma'
            self.dst = _regs(ops[0]); self.srcab = _regs(ops[1]) + _regs(ops[2]); self.srcc = _regs(ops[3])
            self.src = self.srcab + self.srcc
            self.passes = 8 if '32x32' in op else 4
        elif op.startswith('v_cmp'):
            self.kind = 'valu'
            self.dst = _regs(ops[0]);
            if op.startswith('v_cmpx'): self.dst += [('x','exec')]
            for o in ops[1:]: self.src += _regs(o)
        elif base in ('v_readfirstlane_b32','v_readlane_b32'):
            self.kind = 'valu'
            self.dst = _regs(ops[0])
            for o in ops[1:]: self.src += _regs(o)
        elif base.startswith('v_permlane') and 'swap' in base:
            self.kind = 'valu'
            self.dst = _regs(ops[0]) + _regs(ops[1]); self.src = list(self.dst)
        elif base in ('v_add_co_u32','v_sub_co_u32','v_addc_co_u32','v_subb_co_u32','v_subrev_co_u32','v_div_scale_f32','v_mad_u64_u32'):
            self.kind = 'valu'
            self.dst = _regs(ops[0]) + _regs(ops[1])
            for o in ops[2:]: self.src += _regs(o)
        elif op.startswith('v_'):
            self.kind = 'valu'
            if op == 'v_nop':
                pass
            else:
                self.dst = _regs(ops[0])
                for o in ops[1:]: self.src += _regs(o)
                if base in ('v_fmac_f32','v_pk_fmac_f16','v_writelane_b32','v_dot2c_f32_bf16'): self.src += self.dst
                if base == 'v_cndmask_b32' and len(ops) == 3: self.src += _regs('vcc')
        elif op.startswith('ds_'):
            self.kind = 'ds'
            if op.startswith('ds_read') or op.startswith('ds_bpermute') or op.startswith('ds_permute') or op.startswith('ds_swizzle') or '_rtn' in op:
                self.dst = _regs(ops[0])
                for o in ops[1:]: self.src += _regs(o)
            else:
                for o in ops: self.src += _regs(o)
        elif op.startswith('buffer_') or op.startswith('global_') or op.startswith('flat_'):
            self.kind = 'vmem'
            allm = mods
            islds = ('lds' in allm) or ('_lds_' in op)
            self.lds_dma = islds
            if op in ('buffer_wbl2','buffer_inv'):
                pass
            elif islds:
                for o in ops: self.src += _regs(o)
                self.src += [('m','m0')]
            elif 'load' in op:
                self.dst = _regs(ops[0])
                for o in ops[1:]: self.src += _regs(o)
            elif 'atomic' in op:
                for o in ops: self.src += _regs(o)
                if 'sc0' in allm:
                    self.dst = _regs(ops[0])
            else:
                for o in ops: self.src += _regs(o)
                if 'x3' in op or 'x4' in op:
                    self.storedata = _regs(ops[0]) if op.startswith('buffer_') else _regs(ops[1])
        elif op.startswith('s_'):
            self.kind = 'salu'
            if op == 's_nop':
                self.kind = 'nop'; self.nops = int(ops[0], 0) + 1
            elif op in ('s_branch',) or op.startswith('s_cbranch'):
                self.isbranch = True; self.target = ops[0]; self.uncond = (op == 's_branch')
            elif op == 's_endpgm':
                self.isbranch = True; self.uncond = True; self.target = None
            elif op.startswith('s_cmp') or op in ('s_waitcnt','s_barrier','s_setprio','s_sleep','s_sendmsg','s_setreg_b32','s_setreg_imm32_b32'):
                for o in ops: self.src += _regs(o)
            elif op.startswith('s_load') or op.startswith('s_buffer_load') or op.startswith('s_mem') or op.startswith('s_atomic'):
                self.kind = 'smem'
                self.dst = _regs(ops[0])
                for o in ops[1:]: self.src += _regs(o)
            else:
                self.dst = _regs(ops[0])
                for o in ops[1:]: self.src += _regs(o)
                if 'saveexec' in op: self.dst += [('x','exec')]; self.src += [('x','exec')]
        else:
            raise ValueError('unknown instr: ' + text)

    def states(self):
        if self.kind in ('label','directive'): return 0
        if self.kind == 'nop': return self.nops
        return 1

def required(p, c):
    need = 0
    pd = set(p.dst); cs = set(c.src); cd = set(c.dst)
    base_c = re.sub(r'_(e32|e64|dpp|sdwa)$', '', c.op)
    base_p = re.sub(r'_(e32|e64|dpp|sdwa)$', '', p.op)
    if p.kind == 'valu':
        pv = {r for r in pd if r[0] in 'va'}
        ps = {r for r in pd if r[0] == 's'}
        px = ('x','exec') in pd
        if c.kind == 'mfma':
            if pv & cs: need = max(need, 2)
            if px: need = max(need, 4)
        if c.kind == 'valu':
            if ps & cs:
                need = max(need, 4 if base_c in ('v_readlane_b32','v_writelane_b32') else 2)
                if base_c == 'v_div_fmas_f32': need = max(need, 4)
            if base_c in ('v_readfirstlane_b32','v_readlane_b32') and (pv & cs): need = max(need, 1)
            if base_c.startswith('v_permlane') and (pv & cs): need = max(need, 2)
            if c.dpp and (pv & cs): need = max(need, 2)
            if base_p in TRANS and base_c not in TRANS and (pv & cs): need = max(need, 1)
            if px:
                if c.dpp: need = max(need, 5)
                if base_c in ('v_readfirstlane_b32','v_readlane_b32','v_writelane_b32') or base_c.startswith('v_permlane'): need = max(need, 4)
                if ('x','exec') in cs: need = max(need, 2)
        if c.kind == 'vmem' and (ps & cs): need = max(need, 5)
        if c.kind == 'salu' and (ps & cs): need = max(need, 1)
        if c.kind == 'smem' and (ps & cs): need = max(need, 5)
    if p.kind == 'mfma':
        P = p.passes
        if c.kind == 'mfma':
            if pd & set(c.srcab): need = max(need, P + 4)
            if pd & set(c.srcc):
                if not (list(p.dst) == list(c.srcc) and p.passes == c.passes): need = max(need, P + 2)
            if (pd & cd) and not (pd & set(c.srcc)):
                need = max(need, P + 2)
        elif c.kind == 'valu':
            if pd & (cs | cd): need = max(need, P + 4)
            if set(p.srcc) & cd: need = max(need, P - 1)
        elif c.kind in ('vmem','ds'):
            if pd & (cs | cd): need = max(need, P + 4)
    if p.kind == 'salu' and ('m','m0') in pd:
        if c.lds_dma or 'addtid' in c.op or c.op.startswith('s_movrel') or c.op == 's_sendmsg': need = max(need, 1)
    if p.kind == 'vmem' and p.storedata:
        sd = set(p.storedata)
        if sd & cd: need = max(need, 2 if c.kind in ('valu','mfma') else 1)
    return need

MAXD = 20

class Asm:
    def __init__(self):
        self.ins = []
    def __call__(self, text):
        for line in text.split('\n'):
            line = line.strip()
            if not line or line.startswith(';'):
                continue
            self.ins.append(Ins(line))
    def label(self, name):
        self.ins.append(Ins(name + ':'))
    def finalize(self):
        ins = self.ins
        def cfg():
            labels = {x.label: i for i, x in enumerate(ins) if x.kind == 'label'}
            preds = {}
            for i, x in enumerate(ins):
                if x.isbranch and x.target in labels:
                    preds.setdefault(labels[x.target], []).append(i)
            return preds
        preds = cfg()
        i = 0
        self.n_inserted = 0
        while i < len(ins):
            c = ins[i]
            if c.kind in ('label','directive','nop'):
                i += 1; continue
            best = 0
            stack = [(i-1, 0)]
            seen = {}
            while stack:
                j, d = stack.pop()
                if j < 0 or d >= MAXD: continue
                if seen.get(j, 99) <= d: continue
                seen[j] = d
                p = ins[j]
                if p.kind == 'label':
                    for b in preds.get(j, []):
                        stack.append((b, d))
                    k = j-1
                    while k >= 0 and ins[k].kind == 'directive': k -= 1
                    if k >= 0 and not (ins[k].isbranch and ins[k].uncond):
                        stack.append((j-1, d))
                    continue
                if p.kind == 'directive':
                    stack.append((j-1, d)); continue
                r = required(p, c)
                if r > d: best = max(best, r - d)
                stack.append((j-1, d + p.states()))
            if best > 0:
                n = best; new = []
                while n > 0:
                    k = min(n, 16); new.append(Ins('s_nop %d' % (k-1))); n -= k
                ins[i:i] = new
                self.n_inserted += best
                i += len(new)
                preds = cfg()
            i += 1
        return '\n'.join(('' if x.kind == 'label' else '    ') + x.text for x in ins) + '\n'
```

```python
import sys, math
sys.path.insert(0, 'gen')
from asmlib import Asm

NAME = 'standalone__mha_block_cached__near_ridge'
X_BYTES = 983040; KV_BYTES = 9437184; W_BYTES = 7864320; OUT_BYTES = 983040
WS_O = 0; O_BYTES = 9437184
WS_P = 16 << 20; P_BYTES = 8*48*40*1024

def vr(b, n): return f'v[{b}:{b+n-1}]'

def srd(a, d, ptr, nbytes, add=0):
    if add:
        a(f's_add_u32 s{d}, s{ptr}, {add}')
        a(f's_addc_u32 s{d+1}, s{ptr+1}, 0')
    else:
        a(f's_mov_b32 s{d}, s{ptr}')
        a(f's_mov_b32 s{d+1}, s{ptr+1}')
    a(f's_mov_b32 s{d+2}, {nbytes}')
    a(f's_mov_b32 s{d+3}, 0x00020000')

def gemm_phase(a, NT, ACC, FAc, FBc, reads):
    reads = list(reads)
    for tt in range(NT):
        for qt in range(3):
            acc = ACC + (tt*3+qt)*4
            a(f'v_mfma_f32_16x16x32_bf16 {vr(acc,4)}, {vr(FAc+tt*4,4)}, {vr(FBc+qt*4,4)}, {vr(acc,4)}')
            for _ in range(2):
                if reads: a(reads.pop(0))
    for r in reads: a(r)

def k1():
    a = Asm()
    ST = 36864; NS = 4; NSTG = 10
    XOFF = 24576
    ACC = 32; FA0 = 104; FA1 = 128; FB0 = 152; FB1 = 164; KF = 176
    a('s_cmp_ge_u32 s2, 256')
    a('s_cbranch_scc1 K1_END')
    a('s_load_dwordx4 s[4:7], s[0:1], 0')
    a('s_load_dwordx4 s[8:11], s[0:1], 16')
    a('s_load_dwordx2 s[12:13], s[0:1], 56')
    a('s_and_b32 s20, s2, 7')
    a('s_lshr_b32 s21, s2, 3')
    a('s_and_b32 s22, s21, 3')
    a('s_lshl_b32 s20, s20, 2')
    a('s_add_u32 s20, s20, s22')
    a('s_lshr_b32 s21, s21, 2')
    a('v_lshrrev_b32 v1, 6, v0')
    a('v_and_b32 v0, 63, v0')
    a('v_readfirstlane_b32 s23, v1')
    a('s_waitcnt lgkmcnt(0)')
    a('s_cmp_ge_u32 s23, 4')
    a('s_cbranch_scc1 K1_LOADER')
    a('s_and_b32 s24, s23, 1')
    a('s_lshr_b32 s25, s23, 1')
    srd(a, 28, 6, KV_BYTES)
    srd(a, 32, 12, O_BYTES, WS_O)
    a('v_lshrrev_b32 v2, 4, v0')
    a('v_and_b32 v3, 15, v0')
    a('s_lshl_b32 s26, s21, 1')
    a('s_add_u32 s26, s26, s24')
    a('s_lshl_b32 s27, s26, 5')
    a('s_add_u32 s27, s27, s20')
    a('s_mul_i32 s27, s27, 18432')
    a('s_mul_i32 s36, s25, 192')
    a('s_add_u32 s27, s27, s36')
    a('v_and_b32 v4, 1, v2')
    a('v_lshlrev_b32 v4, 1, v4')
    a('v_lshrrev_b32 v5, 1, v2')
    a('v_or_b32 v4, v4, v5')
    a('v_lshlrev_b32 v4, 4, v4')
    a('v_mul_u32_u24 v5, 384, v3')
    a('v_add_u32 v4, v4, v5')
    for kt in range(3):
        if kt: a(f'v_add_u32 v4, {16*384}, v4')
        for f in range(3):
            a(f'buffer_load_dwordx4 {vr(KF+(kt*3+f)*4,4)}, v4, s[28:31], s27 offen offset:{f*64}')
    a('v_bfe_u32 v5, v0, 2, 2')
    a('v_and_b32 v6, 3, v0')
    a('v_lshl_add_u32 v7, v2, 3, v5')
    a('v_mul_u32_u24 v7, 384, v7')
    a('v_lshl_add_u32 v7, v6, 3, v7')
    a('v_lshrrev_b32 v12, 1, v5')
    a('v_and_b32 v13, 1, v2')
    a('v_lshl_or_b32 v12, v13, 1, v12')
    a('s_mul_i32 s36, s25, 6')
    for u in range(4):
        a(f's_add_u32 s37, s36, {u}')
        a(f'v_xor_b32 v13, s37, v12')
        a(f'v_lshl_add_u32 v{8+u}, v13, 5, v7')
    a('v_bfe_u32 v12, v3, 1, 3')
    a('v_xor_b32 v12, v12, v2')
    a('s_mul_i32 s36, s24, 6144')
    a(f's_add_u32 s36, s36, {XOFF}')
    a('v_lshlrev_b32 v13, 7, v3')
    a('v_add_u32 v13, s36, v13')
    a('v_lshl_add_u32 v14, v12, 4, v13')
    a('v_xor_b32 v15, 64, v14')
    for i in range(72): a(f'v_mov_b32 v{ACC+i}, 0')
    def reads(FA, FB, ks):
        r = []
        for qt in range(3):
            r.append(f'ds_read_b128 {vr(FB+qt*4,4)}, v{14+ks} offset:{qt*2048}')
        for tt in range(6):
            for jh in range(2):
                r.append(f'ds_read_b64_tr_b16 {vr(FA+tt*4+jh*2,2)}, v{8+(tt&3)} offset:{ks*12288+jh*1536+(128 if tt>=4 else 0)}')
        return r
    a('s_mov_b32 s38, 0')
    a(f's_mov_b32 s41, {ST}')
    a('s_barrier')
    for r in reads(FA0, FB0, 0): a(r)
    a('s_waitcnt lgkmcnt(0)')
    a.label('K1_LOOP')
    gemm_phase(a, 6, ACC, FA0, FB0, reads(FA1, FB1, 1))
    a('s_add_u32 s38, s38, 1')
    a('s_and_b32 s39, s38, 3')
    a('s_cmp_eq_u32 s39, 0')
    a(f's_cselect_b32 s39, {-(NS-1)*ST & 0xffffffff}, s41')
    a('s_waitcnt lgkmcnt(0)')
    for r in (8,9,10,11,14,15): a(f'v_add_u32 v{r}, s39, v{r}')
    a('s_barrier')
    gemm_phase(a, 6, ACC, FA1, FB1, reads(FA0, FB0, 0))
    a('s_waitcnt lgkmcnt(0)')
    a(f's_cmp_lt_u32 s38, {NSTG}')
    a('s_cbranch_scc1 K1_LOOP')
    QF = 104; SA = 140; SP = 32; PP = 104; VF = 176; OA = 32; OP = 128
    for f in range(3):
        for qt in range(3):
            q = QF + (f*3+qt)*4
            a0 = ACC + ((2*f)*3+qt)*4; a1 = ACC + ((2*f+1)*3+qt)*4
            a(f'v_cvt_pk_bf16_f32 v{q}, v{a0}, v{a0+1}')
            a(f'v_cvt_pk_bf16_f32 v{q+1}, v{a0+2}, v{a0+3}')
            a(f'v_cvt_pk_bf16_f32 v{q+2}, v{a1}, v{a1+1}')
            a(f'v_cvt_pk_bf16_f32 v{q+3}, v{a1+2}, v{a1+3}')
    for f in range(3):
        for qt in range(3):
            q = QF + (f*3+qt)*4
            a(f'v_permlane16_swap_b32 v{q}, v{q+2}')
            a(f'v_permlane16_swap_b32 v{q+1}, v{q+3}')
    a('s_waitcnt vmcnt(0)')
    for f in range(3):
        for kt in range(3):
            for qt in range(3):
                s = SA + (kt*3+qt)*4
                c = '0' if f == 0 else vr(s,4)
                a(f'v_mfma_f32_16x16x32_bf16 {vr(s,4)}, {vr(KF+(kt*3+f)*4,4)}, {vr(QF+(f*3+qt)*4,4)}, {c}')
    a('s_mul_i32 s36, s23, 9216')
    a('s_xor_b32 s37, s23, 2')
    a('s_mul_i32 s37, s37, 9216')
    a('v_lshlrev_b32 v16, 4, v0')
    a('v_add_u32 v17, s37, v16')
    a('v_add_u32 v16, s36, v16')
    for i in range(9):
        a(f'ds_write_b128 v16, {vr(SA+i*4,4)} offset:{i*1024}')
    a('v_lshl_add_u32 v18, v2, 2, v5')
    a('v_mul_u32_u24 v18, 192, v18')
    a('v_lshl_add_u32 v18, v6, 3, v18')
    a(f's_add_u32 s36, s36, {2*ST}')
    a('v_add_u32 v18, s36, v18')
    a('v_and_b32 v19, 1, v2')
    a('v_lshlrev_b32 v19, 5, v19')
    a('v_add_u32 v20, v18, v19')
    a('v_sub_u32 v21, v18, v19')
    a('s_waitcnt lgkmcnt(0)')
    a('s_barrier')
    for i in range(9):
        a(f'ds_read_b128 {vr(SP+i*4,4)}, v17 offset:{i*1024}')
    for tt in range(6):
        for kt in range(3):
            a(f'ds_read_b64_tr_b16 {vr(VF+tt*6+kt*2,2)}, v{20+(tt&1)} offset:{kt*16*192+tt*32}')
    a('s_waitcnt lgkmcnt(15)')
    for i in range(36): a(f'v_add_f32 v{SA+i}, v{SA+i}, v{SP+i}')
    c = (192 ** -0.5) * math.log2(math.e)
    import struct
    cbits = struct.unpack('<I', struct.pack('<f', c))[0]
    a(f's_mov_b32 s40, {cbits}')
    M = 22
    def vals(qt): return [SA+(kt*3+qt)*4+r for kt in range(3) for r in range(4)]
    for qt in range(3):
        v = vals(qt)
        a(f'v_max3_f32 v{M+qt}, v{v[0]}, v{v[1]}, v{v[2]}')
        for i in range(3, 11, 2):
            a(f'v_max3_f32 v{M+qt}, v{M+qt}, v{v[i]}, v{v[i+1]}')
        a(f'v_max_f32 v{M+qt}, v{M+qt}, v{v[11]}')
    def xreduce(R, T, op):
        for sw in ('v_permlane16_swap_b32', 'v_permlane32_swap_b32'):
            for qt in range(3): a(f'v_mov_b32 v{T+qt}, v{R+qt}')
            for qt in range(3): a(f'{sw} v{R+qt}, v{T+qt}')
            for qt in range(3): a(f'{op} v{R+qt}, v{R+qt}, v{T+qt}')
    xreduce(M, 25, 'v_max_f32')
    for qt in range(3): a(f'v_mul_f32 v{M+qt}, s40, v{M+qt}')
    for qt in range(3):
        for x in vals(qt): a(f'v_fma_f32 v{x}, v{x}, s40, -v{M+qt}')
    for qt in range(3):
        for x in vals(qt): a(f'v_exp_f32 v{x}, v{x}')
    S = 28
    for qt in range(3):
        v = vals(qt)
        a(f'v_add_f32 v{S+qt}, v{v[0]}, v{v[1]}')
        for x in v[2:]: a(f'v_add_f32 v{S+qt}, v{S+qt}, v{x}')
    xreduce(S, 25, 'v_add_f32')
    for qt in range(3): a(f'v_rcp_f32 v{S+qt}, v{S+qt}')
    for qt in range(3):
        for x in vals(qt): a(f'v_mul_f32 v{x}, v{x}, v{S+qt}')
    for qt in range(3):
        for kt in range(3):
            s = SA+(kt*3+qt)*4
            a(f'v_cvt_pk_bf16_f32 v{PP+qt*8+kt*2}, v{s}, v{s+1}')
            a(f'v_cvt_pk_bf16_f32 v{PP+qt*8+kt*2+1}, v{s+2}, v{s+3}')
    a('s_waitcnt lgkmcnt(0)')
    for tt in range(6):
        for qt in range(3):
            o = OA+(tt*3+qt)*4
            a(f'v_mfma_f32_16x16x32_bf16 {vr(o,4)}, {vr(VF+tt*6,4)}, {vr(PP+qt*8,4)}, 0')
    for tt in range(6):
        for qt in range(3):
            o = OA+(tt*3+qt)*4
            a(f'v_mfma_f32_16x16x16_bf16 {vr(o,4)}, {vr(VF+tt*6+4,2)}, {vr(PP+qt*8+4,2)}, {vr(o,4)}')
    a('s_mul_i32 s36, s26, 576')
    a('s_mul_i32 s37, s20, 6')
    a('s_add_u32 s36, s36, s37')
    a('s_mul_i32 s37, s25, 3')
    a('s_add_u32 s36, s36, s37')
    a('s_lshl_b32 s36, s36, 10')
    a('v_lshlrev_b32 v16, 4, v0')
    for qt in range(3):
        for f in range(3):
            q = OP + (qt*3+f)*4
            a0 = OA + ((2*f)*3+qt)*4; a1 = OA + ((2*f+1)*3+qt)*4
            a(f'v_cvt_pk_bf16_f32 v{q}, v{a0}, v{a0+1}')
            a(f'v_cvt_pk_bf16_f32 v{q+1}, v{a0+2}, v{a0+3}')
            a(f'v_cvt_pk_bf16_f32 v{q+2}, v{a1}, v{a1+1}')
            a(f'v_cvt_pk_bf16_f32 v{q+3}, v{a1+2}, v{a1+3}')
            a(f'buffer_store_dwordx4 {vr(q,4)}, v16, s[32:35], s36 offen offset:{f*1024}')
        if qt < 2: a(f's_add_u32 s36, s36, {192*1024}')
    a('s_endpgm')
    a.label('K1_LOADER')
    a('s_sub_u32 s23, s23, 4')
    srd(a, 28, 10, W_BYTES)
    srd(a, 32, 4, X_BYTES)
    srd(a, 48, 8, KV_BYTES)
    a('s_mul_i32 s24, s23, %d' % (16*12288))
    a('s_mul_i32 s25, s20, 384')
    a('s_add_u32 s24, s24, s25')
    for i in range(6):
        a(f'v_add_u32 v1, {64*i}, v0')
        a('v_mul_u32_u24 v2, 2731, v1')
        a('v_lshrrev_b32 v2, 16, v2')
        a('v_mul_u32_u24 v3, 24, v2')
        a('v_sub_u32 v3, v1, v3')
        a('v_bfe_u32 v4, v2, 1, 1')
        a('v_bfe_u32 v5, v2, 3, 1')
        a('v_lshl_or_b32 v4, v5, 1, v4')
        a('v_lshlrev_b32 v4, 1, v4')
        a('v_xor_b32 v3, v3, v4')
        a('v_mul_u32_u24 v2, 12288, v2')
        a('v_lshl_add_u32 v2, v3, 4, v2')
        a(f'v_add_u32 v{8+i}, s24, v2')
        if i & 3: a(f'v_subrev_u32 v{8+i}, {(i&3)*1024}, v{8+i}')
    a('s_mul_i32 s24, s21, 96')
    a('s_mul_i32 s25, s23, 24')
    a('s_add_u32 s24, s24, s25')
    a('v_lshrrev_b32 v1, 3, v0')
    a('v_and_b32 v2, 7, v0')
    for i in range(3):
        a(f'v_add_u32 v3, {8*i}, v1')
        a('v_add_u32 v3, s25, v3')
        a('v_bfe_u32 v4, v3, 1, 3')
        a('v_xor_b32 v4, v4, v2')
        a(f'v_add_u32 v3, {8*i}, v1')
        a('v_add_u32 v3, s24, v3')
        a('v_mul_u32_u24 v3, 1280, v3')
        a(f'v_lshl_add_u32 v{14+i}, v4, 4, v3')
        if i: a(f'v_subrev_u32 v{14+i}, {i*1024}, v{14+i}')
    a('s_and_b32 s24, s23, 1')
    a('s_lshl_b32 s25, s21, 1')
    a('s_add_u32 s25, s25, s24')
    a('s_lshl_b32 s25, s25, 5')
    a('s_add_u32 s25, s25, s20')
    a('s_mul_i32 s25, s25, 18432')
    a('s_lshr_b32 s24, s23, 1')
    a('s_mul_i32 s24, s24, 192')
    a('s_add_u32 s26, s25, s24')
    for i in range(9):
        a(f'v_add_u32 v1, {64*i}, v0')
        a('v_mul_u32_u24 v2, 5462, v1')
        a('v_lshrrev_b32 v2, 16, v2')
        a('v_mul_u32_u24 v3, 12, v2')
        a('v_sub_u32 v3, v1, v3')
        a('v_bfe_u32 v4, v2, 2, 1')
        a('v_lshlrev_b32 v4, 1, v4')
        a('v_xor_b32 v3, v3, v4')
        a('v_mul_u32_u24 v2, 384, v2')
        a(f'v_lshl_add_u32 v{20+i}, v3, 4, v2')
        if i & 3: a(f'v_subrev_u32 v{20+i}, {(i&3)*1024}, v{20+i}')
    a('s_mov_b32 s40, 0')
    a('s_mov_b32 s41, 0')
    a('s_mul_i32 s43, s23, 6144')
    a('s_mul_i32 s44, s23, 3072')
    a(f's_add_u32 s44, s44, {XOFF}')
    a('s_mov_b32 s42, 0')
    def issue():
        a('s_add_u32 m0, s42, s43')
        for i in range(6):
            if i == 4: a('s_add_u32 m0, m0, 4096')
            a(f'buffer_load_dwordx4 v{8+i}, s[28:31], s40 offen offset:{(i&3)*1024} lds')
        a('s_add_u32 m0, s42, s44')
        for i in range(3):
            a(f'buffer_load_dwordx4 v{14+i}, s[32:35], s41 offen offset:{i*1024} lds')
        a(f's_add_u32 s40, s40, {64*12288}')
        a('s_add_u32 s41, s41, 128')
        a(f's_add_u32 s42, s42, {ST}')
        a(f's_cmp_eq_u32 s42, {NS*ST}')
        a('s_cselect_b32 s42, 0, s42')
    a('s_mov_b32 s38, 0')
    a.label('K1_LPRO')
    issue()
    a('s_add_u32 s38, s38, 1')
    a(f's_cmp_lt_u32 s38, {NS}')
    a('s_cbranch_scc1 K1_LPRO')
    a('s_waitcnt vmcnt(27)')
    a('s_barrier')
    a('s_mov_b32 s38, 0')
    a.label('K1_LLOOP')
    a('s_waitcnt vmcnt(18)')
    a('s_barrier')
    issue()
    a('s_add_u32 s38, s38, 1')
    a(f's_cmp_lt_u32 s38, {NSTG-NS}')
    a('s_cbranch_scc1 K1_LLOOP')
    a('s_waitcnt vmcnt(18)')
    a('s_barrier')
    a('s_mul_i32 s45, s23, 9216')
    a(f's_add_u32 m0, s45, {2*ST}')
    for i in range(9):
        if i and (i & 3) == 0: a('s_add_u32 m0, m0, 4096')
        a(f'buffer_load_dwordx4 v{20+i}, s[48:51], s26 offen offset:{(i&3)*1024} lds')
    a('s_waitcnt vmcnt(18)')
    a('s_barrier')
    a('s_waitcnt vmcnt(9)')
    a('s_barrier')
    a('s_barrier')
    a('s_waitcnt vmcnt(0)')
    a('s_barrier')
    a.label('K1_END')
    a('s_endpgm')
    return a.finalize()

def k2():
    a = Asm()
    ST = 32768; NS = 4; NSTG = 12
    XOFF = 20480
    ACC = 32; FA0 = 96; FA1 = 116; FB0 = 136; FB1 = 148
    a('s_cmp_ge_u32 s2, 256')
    a('s_cbranch_scc1 K2_END')
    a('s_load_dwordx2 s[4:5], s[0:1], 32')
    a('s_load_dwordx2 s[12:13], s[0:1], 56')
    a('s_and_b32 s20, s2, 7')
    a('s_lshr_b32 s21, s2, 3')
    a('s_and_b32 s22, s21, 3')
    a('s_lshr_b32 s21, s21, 2')
    a('v_lshrrev_b32 v1, 6, v0')
    a('v_and_b32 v0, 63, v0')
    a('v_readfirstlane_b32 s23, v1')
    a('s_waitcnt lgkmcnt(0)')
    a('s_cmp_ge_u32 s23, 4')
    a('s_cbranch_scc1 K2_LOADER')
    a('s_and_b32 s24, s23, 1')
    a('s_lshr_b32 s25, s23, 1')
    srd(a, 32, 12, P_BYTES, WS_P)
    a('v_lshrrev_b32 v2, 4, v0')
    a('v_bfe_u32 v5, v0, 2, 2')
    a('v_and_b32 v6, 3, v0')
    a('v_lshl_add_u32 v7, v2, 2, v5')
    a('v_mul_u32_u24 v7, 320, v7')
    a('v_lshl_add_u32 v7, v6, 3, v7')
    a('v_and_b32 v12, 1, v2')
    a('s_mul_i32 s36, s25, 5')
    for u in range(2):
        a(f's_add_u32 s37, s36, {u}')
        a('v_xor_b32 v13, s37, v12')
        a(f'v_lshl_add_u32 v{8+u}, v13, 5, v7')
    a('s_mul_i32 s36, s24, 6144')
    a(f's_add_u32 s36, s36, {XOFF}')
    a('v_lshlrev_b32 v14, 4, v0')
    a('v_add_u32 v14, s36, v14')
    for i in range(60): a(f'v_mov_b32 v{ACC+i}, 0')
    def reads(FA, FB, ks):
        r = []
        for qt in range(3):
            r.append(f'ds_read_b128 {vr(FB+qt*4,4)}, v14 offset:{qt*2048+ks*1024}')
        for tt in range(5):
            for jh in range(2):
                r.append(f'ds_read_b64_tr_b16 {vr(FA+tt*4+jh*2,2)}, v{8+(tt&1)} offset:{ks*32*320+jh*16*320+(tt>>1)*64}')
        return r
    a('s_mov_b32 s38, 0')
    a(f's_mov_b32 s41, {ST}')
    a('s_barrier')
    for r in reads(FA0, FB0, 0): a(r)
    a('s_waitcnt lgkmcnt(0)')
    a.label('K2_LOOP')
    gemm_phase(a, 5, ACC, FA0, FB0, reads(FA1, FB1, 1))
    a('s_add_u32 s38, s38, 1')
    a('s_and_b32 s39, s38, 3')
    a('s_cmp_eq_u32 s39, 0')
    a(f's_cselect_b32 s39, {-(NS-1)*ST & 0xffffffff}, s41')
    a('s_waitcnt lgkmcnt(0)')
    for r in (8,9,14): a(f'v_add_u32 v{r}, s39, v{r}')
    a('s_barrier')
    gemm_phase(a, 5, ACC, FA1, FB1, reads(FA0, FB0, 0))
    a('s_waitcnt lgkmcnt(0)')
    a(f's_cmp_lt_u32 s38, {NSTG}')
    a('s_cbranch_scc1 K2_LOOP')
    a('s_mul_i32 s36, s20, 48')
    a('s_mul_i32 s37, s21, 6')
    a('s_add_u32 s36, s36, s37')
    a('s_mul_i32 s37, s24, 3')
    a('s_add_u32 s36, s36, s37')
    a('s_mul_i32 s36, s36, 40')
    a('s_mul_i32 s37, s22, 10')
    a('s_add_u32 s36, s36, s37')
    a('s_mul_i32 s37, s25, 5')
    a('s_add_u32 s36, s36, s37')
    a('s_lshl_b32 s36, s36, 10')
    a('v_lshlrev_b32 v16, 4, v0')
    a('v_add_u32 v17, 4096, v16')
    for qt in range(3):
        for tt in range(5):
            acc = ACC+(tt*3+qt)*4
            a(f'buffer_store_dwordx4 {vr(acc,4)}, v{16+(tt>>2)}, s[32:35], s36 offen offset:{(tt&3)*1024}')
        if qt < 2: a(f's_add_u32 s36, s36, {40*1024}')
    a('s_endpgm')
    a.label('K2_LOADER')
    a('s_sub_u32 s23, s23, 4')
    srd(a, 28, 4, W_BYTES)
    srd(a, 32, 12, O_BYTES, WS_O)
    a('s_mul_i32 s24, s20, 768')
    a('s_lshl_b32 s25, s23, 4')
    a('s_add_u32 s24, s24, s25')
    a('s_mul_i32 s24, s24, 1280')
    a('s_mul_i32 s25, s22, 320')
    a('s_add_u32 s24, s24, s25')
    for i in range(5):
        a(f'v_add_u32 v1, {64*i}, v0')
        a('v_mul_u32_u24 v2, 3277, v1')
        a('v_lshrrev_b32 v2, 16, v2')
        a('v_mul_u32_u24 v3, 20, v2')
        a('v_sub_u32 v3, v1, v3')
        a('v_bfe_u32 v4, v2, 2, 1')
        a('v_lshlrev_b32 v4, 1, v4')
        a('v_xor_b32 v3, v3, v4')
        a('v_mul_u32_u24 v2, 1280, v2')
        a('v_lshl_add_u32 v2, v3, 4, v2')
        a(f'v_add_u32 v{8+i}, s24, v2')
        if i & 3: a(f'v_subrev_u32 v{8+i}, {(i&3)*1024}, v{8+i}')
    a('v_lshlrev_b32 v1, 4, v0')
    a('s_mul_i32 s24, s23, 3')
    for i in range(3):
        a(f's_add_u32 s25, s24, {i}')
        a('s_lshr_b32 s26, s25, 1')
        a('s_and_b32 s25, s25, 1')
        a('s_mul_i32 s27, s21, 6')
        a('s_add_u32 s26, s26, s27')
        a('s_mul_i32 s26, s26, 192')
        a('s_add_u32 s26, s26, s25')
        a('s_mul_i32 s27, s20, 24')
        a('s_add_u32 s26, s26, s27')
        a('s_lshl_b32 s26, s26, 10')
        if i: a(f's_sub_u32 s26, s26, {i*1024}')
        a(f'v_add_u32 v{14+i}, s26, v1')
    a('s_mov_b32 s40, 0')
    a('s_mov_b32 s41, 0')
    a('s_mul_i32 s43, s23, 5120')
    a('s_mul_i32 s44, s23, 3072')
    a(f's_add_u32 s44, s44, {XOFF}')
    a('s_mov_b32 s42, 0')
    def issue():
        a('s_add_u32 m0, s42, s43')
        for i in range(5):
            if i == 4: a('s_add_u32 m0, m0, 4096')
            a(f'buffer_load_dwordx4 v{8+i}, s[28:31], s40 offen offset:{(i&3)*1024} lds')
        a('s_add_u32 m0, s42, s44')
        for i in range(3):
            a(f'buffer_load_dwordx4 v{14+i}, s[32:35], s41 offen offset:{i*1024} lds')
        a(f's_add_u32 s40, s40, {64*1280}')
        a('s_add_u32 s41, s41, 2048')
        a(f's_add_u32 s42, s42, {ST}')
        a(f's_cmp_eq_u32 s42, {NS*ST}')
        a('s_cselect_b32 s42, 0, s42')
    a('s_mov_b32 s38, 0')
    a.label('K2_LPRO')
    issue()
    a('s_add_u32 s38, s38, 1')
    a(f's_cmp_lt_u32 s38, {NS}')
    a('s_cbranch_scc1 K2_LPRO')
    a('s_waitcnt vmcnt(24)')
    a('s_barrier')
    a('s_mov_b32 s38, 0')
    a.label('K2_LLOOP')
    a('s_waitcnt vmcnt(16)')
    a('s_barrier')
    issue()
    a('s_add_u32 s38, s38, 1')
    a(f's_cmp_lt_u32 s38, {NSTG-NS}')
    a('s_cbranch_scc1 K2_LLOOP')
    a('s_waitcnt vmcnt(16)')
    a('s_barrier')
    a('s_waitcnt vmcnt(8)')
    a('s_barrier')
    a('s_waitcnt vmcnt(0)')
    a('s_barrier')
    a('s_barrier')
    a.label('K2_END')
    a('s_endpgm')
    return a.finalize()

def k3():
    a = Asm()
    a('s_cmp_ge_u32 s2, 480')
    a('s_cbranch_scc1 K3_END')
    a('s_load_dwordx2 s[4:5], s[0:1], 40')
    a('s_load_dwordx2 s[12:13], s[0:1], 56')
    a('v_lshrrev_b32 v1, 6, v0')
    a('v_and_b32 v0, 63, v0')
    a('v_readfirstlane_b32 s23, v1')
    a('s_lshl_b32 s20, s2, 2')
    a('s_add_u32 s20, s20, s23')
    a('s_waitcnt lgkmcnt(0)')
    srd(a, 28, 12, P_BYTES, WS_P)
    srd(a, 32, 4, OUT_BYTES)
    a('v_lshlrev_b32 v2, 4, v0')
    a('s_lshl_b32 s21, s20, 10')
    for s in range(8):
        a(f'buffer_load_dwordx4 {vr(8+s*4,4)}, v2, s[28:31], s21 offen')
        if s < 7: a(f's_add_u32 s21, s21, {1920*1024}')
    a('s_mul_i32 s22, s20, 1639')
    a('s_lshr_b32 s22, s22, 16')
    a('s_mul_i32 s24, s22, 40')
    a('s_sub_u32 s24, s20, s24')
    a('s_mul_i32 s22, s22, %d' % (16*1280))
    a('s_lshl_b32 s24, s24, 5')
    a('s_add_u32 s22, s22, s24')
    a('v_and_b32 v3, 15, v0')
    a('v_mul_u32_u24 v3, 1280, v3')
    a('v_lshrrev_b32 v4, 4, v0')
    a('v_lshl_add_u32 v3, v4, 3, v3')
    for s in range(1, 8):
        a(f's_waitcnt vmcnt({7-s})')
        for r in range(4): a(f'v_add_f32 v{8+r}, v{8+r}, v{8+s*4+r}')
    a('v_cvt_pk_bf16_f32 v4, v8, v9')
    a('v_cvt_pk_bf16_f32 v5, v10, v11')
    a('buffer_store_dwordx2 v[4:5], v3, s[32:35], s22 offen')
    a.label('K3_END')
    a('s_endpgm')
    return a.finalize()

def kd(name, vgpr, sgpr=64):
    acc = (vgpr + 3)//4*4
    return f""".amdhsa_kernel {name}
  .amdhsa_next_free_vgpr {vgpr}
  .amdhsa_next_free_sgpr {sgpr}
  .amdhsa_accum_offset {acc}
  .amdhsa_group_segment_fixed_size 0
  .amdhsa_kernarg_size 64
  .amdhsa_user_sgpr_count 2
  .amdhsa_user_sgpr_kernarg_segment_ptr 1
  .amdhsa_system_sgpr_workgroup_id_x 1
.end_amdhsa_kernel
"""

def main(out):
    assert all((p*2731)>>16 == p//24 for p in range(384))
    assert all((p*5462)>>16 == p//12 for p in range(576))
    assert all((p*3277)>>16 == p//20 for p in range(320))
    assert all((p*1639)>>16 == p//40 for p in range(1920))
    hdr = open('cdna_kernels/%s.s.ref' % NAME).read().split('; Override')[0]
    s = hdr
    s += '; @launch kernel=mha_k1_kernel grid=(256,1,1) block=(512,1,1) lds=147456\n'
    s += '; @launch kernel=mha_k2_kernel grid=(256,1,1) block=(512,1,1) lds=131072\n'
    s += '; @launch kernel=mha_k3_kernel grid=(480,1,1) block=(256,1,1) lds=0\n'
    s += '.amdgcn_target "amdgcn-amd-amdhsa--gfx950"\n.text\n'
    for nm, body in (('mha_k1_kernel', k1()), ('mha_k2_kernel', k2()), ('mha_k3_kernel', k3())):
        s += f'.globl {nm}\n.p2align 8\n.type {nm},@function\n{nm}:\n' + body
    s += '.section .rodata,"a"\n'
    for nm, v in (('mha_k1_kernel', 224), ('mha_k2_kernel', 160), ('mha_k3_kernel', 40)):
        s += '.p2align 6\n' + kd(nm, v)
    open(out, 'w').write(s)

if __name__ == '__main__':
    main(sys.argv[1] if len(sys.argv) > 1 else 'cdna_kernels/%s.s' % NAME)
```

```python
import sys, math
sys.path.insert(0, 'gen')
from asmlib import Asm

NAME = 'standalone__mha_block_cached__near_ridge'
X_BYTES = 983040; KV_BYTES = 9437184; W_BYTES = 7864320; OUT_BYTES = 983040
WS_O = 0; O_BYTES = 9437184
WS_P = 16 << 20; P_BYTES = 8*48*40*1024

def vr(b, n): return f'v[{b}:{b+n-1}]'

def srd(a, d, ptr, nbytes, add=0):
    if add:
        a(f's_add_u32 s{d}, s{ptr}, {add}')
        a(f's_addc_u32 s{d+1}, s{ptr+1}, 0')
    else:
        a(f's_mov_b32 s{d}, s{ptr}')
        a(f's_mov_b32 s{d+1}, s{ptr+1}')
    a(f's_mov_b32 s{d+2}, {nbytes}')
    a(f's_mov_b32 s{d+3}, 0x00020000')

STAMPS = False
OPT = {'ntkv':1,'ntw':1,'rot':1,'nto':0}
def NT(k): return ' nt' if OPT[k] else ''
LOOPSTAMP = False
STAMP_OFF = 200 << 20
class Stamper:
    def __init__(self, a, kidx): self.a = a; self.k = kidx; self.n = 0
    def stamp(self):
        if not STAMPS: return
        assert self.n < 23
        self.a(f's_memrealtime s[{54+2*self.n}:{55+2*self.n}]'); self.n += 1
    def flush(self, wavereg, waveadd=0):
        if not STAMPS: return
        a = self.a
        a('s_waitcnt lgkmcnt(0) vmcnt(0)')
        srd(a, 28, 12, 1 << 24, STAMP_OFF)
        a(f's_add_u32 s52, s2, {self.k*512}')
        a('s_lshl_b32 s52, s52, 3')
        a(f's_add_u32 s52, s52, s{wavereg}')
        if waveadd: a(f's_add_u32 s52, s52, {waveadd}')
        a('s_lshl_b32 s52, s52, 8')
        a('v_mov_b32 v1, 0')
        for i in range(self.n):
            a(f'v_mov_b32 v2, s{54+2*i}')
            a(f'v_mov_b32 v3, s{55+2*i}')
            a(f'buffer_store_dwordx2 v[2:3], v1, s[28:31], s52 offen offset:{i*8}')
        a(f'v_mov_b32 v2, {self.n}')
        a('v_mov_b32 v3, 0')
        a(f'buffer_store_dwordx2 v[2:3], v1, s[28:31], s52 offen offset:248')
    def fork(self):
        c = Stamper(self.a, self.k); c.n = self.n; return c

def gemm_phase(a, NT, ACC, FAc, FBc, reads):
    reads = list(reads)
    for tt in range(NT):
        for qt in range(3):
            acc = ACC + (tt*3+qt)*4
            a(f'v_mfma_f32_16x16x32_bf16 {vr(acc,4)}, {vr(FAc+tt*4,4)}, {vr(FBc+qt*4,4)}, {vr(acc,4)}')
            for _ in range(2):
                if reads: a(reads.pop(0))
    for r in reads: a(r)

def k1():
    a = Asm()
    ST = 36864; NS = 4; NSTG = 10
    XOFF = 24576
    ACC = 32; FA0 = 104; FA1 = 128; FB0 = 152; FB1 = 164; KF = 176
    a('s_cmp_ge_u32 s2, 256')
    a('s_cbranch_scc1 K1_END')
    T = Stamper(a, 0); T.stamp(); TL = T.fork()
    a('s_load_dwordx4 s[4:7], s[0:1], 0')
    a('s_load_dwordx4 s[8:11], s[0:1], 16')
    a('s_load_dwordx2 s[12:13], s[0:1], 56')
    a('s_and_b32 s20, s2, 7')
    a('s_lshr_b32 s21, s2, 3')
    a('s_and_b32 s22, s21, 3')
    a('s_lshl_b32 s20, s20, 2')
    a('s_add_u32 s20, s20, s22')
    a('s_lshr_b32 s21, s21, 2')
    a('v_lshrrev_b32 v1, 6, v0')
    a('v_and_b32 v0, 63, v0')
    a('v_readfirstlane_b32 s23, v1')
    a('s_waitcnt lgkmcnt(0)')
    a('s_cmp_ge_u32 s23, 4')
    a('s_cbranch_scc1 K1_LOADER')
    a('s_and_b32 s24, s23, 1')
    a('s_lshr_b32 s25, s23, 1')
    srd(a, 28, 6, KV_BYTES)
    srd(a, 32, 12, O_BYTES, WS_O)
    a('v_lshrrev_b32 v2, 4, v0')
    a('v_and_b32 v3, 15, v0')
    a('s_lshl_b32 s26, s21, 1')
    a('s_add_u32 s26, s26, s24')
    a('s_lshl_b32 s27, s26, 5')
    a('s_add_u32 s27, s27, s20')
    a('s_mul_i32 s27, s27, 18432')
    a('s_mul_i32 s36, s25, 192')
    a('s_add_u32 s27, s27, s36')
    a('v_and_b32 v4, 1, v2')
    a('v_lshlrev_b32 v4, 1, v4')
    a('v_lshrrev_b32 v5, 1, v2')
    a('v_or_b32 v4, v4, v5')
    a('v_lshlrev_b32 v4, 4, v4')
    a('v_mul_u32_u24 v5, 384, v3')
    a('v_add_u32 v4, v4, v5')
    for kt in range(3):
        if kt: a(f'v_add_u32 v4, {16*384}, v4')
        for f in range(3):
            a(f'buffer_load_dwordx4 {vr(KF+(kt*3+f)*4,4)}, v4, s[28:31], s27 offen offset:{f*64}{NT("ntkv")}')
    a('v_bfe_u32 v5, v0, 2, 2')
    a('v_and_b32 v6, 3, v0')
    a('v_lshl_add_u32 v7, v2, 3, v5')
    a('v_mul_u32_u24 v7, 384, v7')
    a('v_lshl_add_u32 v7, v6, 3, v7')
    a('v_lshrrev_b32 v12, 1, v5')
    a('v_and_b32 v13, 1, v2')
    a('v_lshl_or_b32 v12, v13, 1, v12')
    a('s_mul_i32 s36, s25, 6')
    for u in range(4):
        a(f's_add_u32 s37, s36, {u}')
        a(f'v_xor_b32 v13, s37, v12')
        a(f'v_lshl_add_u32 v{8+u}, v13, 5, v7')
    a('v_bfe_u32 v12, v3, 1, 3')
    a('v_xor_b32 v12, v12, v2')
    a('s_mul_i32 s36, s24, 6144')
    a(f's_add_u32 s36, s36, {XOFF}')
    a('v_lshlrev_b32 v13, 7, v3')
    a('v_add_u32 v13, s36, v13')
    a('v_lshl_add_u32 v14, v12, 4, v13')
    a('v_xor_b32 v15, 64, v14')
    for i in range(72): a(f'v_mov_b32 v{ACC+i}, 0')
    def reads(FA, FB, ks):
        r = []
        for qt in range(3):
            r.append(f'ds_read_b128 {vr(FB+qt*4,4)}, v{14+ks} offset:{qt*2048}')
        for tt in range(6):
            for jh in range(2):
                r.append(f'ds_read_b64_tr_b16 {vr(FA+tt*4+jh*2,2)}, v{8+(tt&3)} offset:{ks*12288+jh*1536+(128 if tt>=4 else 0)}')
        return r
    a('s_mov_b32 s38, 0')
    a(f's_mov_b32 s41, {ST}')
    T.stamp()
    a('s_barrier')
    T.stamp()
    for r in reads(FA0, FB0, 0): a(r)
    a('s_waitcnt lgkmcnt(0)')
    UNR = LOOPSTAMP
    if not UNR: a.label('K1_LOOP')
    for it in range(NSTG if UNR else 1):
        gemm_phase(a, 6, ACC, FA0, FB0, reads(FA1, FB1, 1))
        a('s_add_u32 s38, s38, 1')
        a('s_and_b32 s39, s38, 3')
        a('s_cmp_eq_u32 s39, 0')
        a(f's_cselect_b32 s39, {-(NS-1)*ST & 0xffffffff}, s41')
        a('s_waitcnt lgkmcnt(0)')
        for r in (8,9,10,11,14,15): a(f'v_add_u32 v{r}, s39, v{r}')
        if UNR: T.stamp()
        a('s_barrier')
        if UNR: T.stamp()
        gemm_phase(a, 6, ACC, FA1, FB1, reads(FA0, FB0, 0))
        a('s_waitcnt lgkmcnt(0)')
    if not UNR:
        a(f's_cmp_lt_u32 s38, {NSTG}')
        a('s_cbranch_scc1 K1_LOOP')
    if UNR: T.stamp = lambda: None
    T.stamp()
    QF = 104; SA = 140; SP = 32; PP = 104; VF = 176; OA = 32; OP = 128
    for f in range(3):
        for qt in range(3):
            q = QF + (f*3+qt)*4
            a0 = ACC + ((2*f)*3+qt)*4; a1 = ACC + ((2*f+1)*3+qt)*4
            a(f'v_cvt_pk_bf16_f32 v{q}, v{a0}, v{a0+1}')
            a(f'v_cvt_pk_bf16_f32 v{q+1}, v{a0+2}, v{a0+3}')
            a(f'v_cvt_pk_bf16_f32 v{q+2}, v{a1}, v{a1+1}')
            a(f'v_cvt_pk_bf16_f32 v{q+3}, v{a1+2}, v{a1+3}')
    for f in range(3):
        for qt in range(3):
            q = QF + (f*3+qt)*4
            a(f'v_permlane16_swap_b32 v{q}, v{q+2}')
            a(f'v_permlane16_swap_b32 v{q+1}, v{q+3}')
    a('s_waitcnt vmcnt(0)')
    for f in range(3):
        for kt in range(3):
            for qt in range(3):
                s = SA + (kt*3+qt)*4
                c = '0' if f == 0 else vr(s,4)
                a(f'v_mfma_f32_16x16x32_bf16 {vr(s,4)}, {vr(KF+(kt*3+f)*4,4)}, {vr(QF+(f*3+qt)*4,4)}, {c}')
    a('s_mul_i32 s36, s23, 9216')
    a('s_xor_b32 s37, s23, 2')
    a('s_mul_i32 s37, s37, 9216')
    a('v_lshlrev_b32 v16, 4, v0')
    a('v_add_u32 v17, s37, v16')
    a('v_add_u32 v16, s36, v16')
    for i in range(9):
        a(f'ds_write_b128 v16, {vr(SA+i*4,4)} offset:{i*1024}')
    a('v_lshl_add_u32 v18, v2, 2, v5')
    a('v_mul_u32_u24 v18, 192, v18')
    a('v_lshl_add_u32 v18, v6, 3, v18')
    a(f's_add_u32 s36, s36, {2*ST}')
    a('v_add_u32 v18, s36, v18')
    a('v_and_b32 v19, 1, v2')
    a('v_lshlrev_b32 v19, 5, v19')
    a('v_add_u32 v20, v18, v19')
    a('v_sub_u32 v21, v18, v19')
    T.stamp()
    a('s_waitcnt lgkmcnt(0)')
    a('s_barrier')
    T.stamp()
    for i in range(9):
        a(f'ds_read_b128 {vr(SP+i*4,4)}, v17 offset:{i*1024}')
    for tt in range(6):
        for kt in range(3):
            a(f'ds_read_b64_tr_b16 {vr(VF+tt*6+kt*2,2)}, v{20+(tt&1)} offset:{kt*16*192+tt*32}')
    a('s_waitcnt lgkmcnt(15)')
    for i in range(36): a(f'v_add_f32 v{SA+i}, v{SA+i}, v{SP+i}')
    c = (192 ** -0.5) * math.log2(math.e)
    import struct
    cbits = struct.unpack('<I', struct.pack('<f', c))[0]
    a(f's_mov_b32 s40, {cbits}')
    M = 22
    def vals(qt): return [SA+(kt*3+qt)*4+r for kt in range(3) for r in range(4)]
    for qt in range(3):
        v = vals(qt)
        a(f'v_max3_f32 v{M+qt}, v{v[0]}, v{v[1]}, v{v[2]}')
        for i in range(3, 11, 2):
            a(f'v_max3_f32 v{M+qt}, v{M+qt}, v{v[i]}, v{v[i+1]}')
        a(f'v_max_f32 v{M+qt}, v{M+qt}, v{v[11]}')
    def xreduce(R, T, op):
        for sw in ('v_permlane16_swap_b32', 'v_permlane32_swap_b32'):
            for qt in range(3): a(f'v_mov_b32 v{T+qt}, v{R+qt}')
            for qt in range(3): a(f'{sw} v{R+qt}, v{T+qt}')
            for qt in range(3): a(f'{op} v{R+qt}, v{R+qt}, v{T+qt}')
    xreduce(M, 25, 'v_max_f32')
    for qt in range(3): a(f'v_mul_f32 v{M+qt}, s40, v{M+qt}')
    for qt in range(3):
        for x in vals(qt): a(f'v_fma_f32 v{x}, v{x}, s40, -v{M+qt}')
    for qt in range(3):
        for x in vals(qt): a(f'v_exp_f32 v{x}, v{x}')
    S = 28
    for qt in range(3):
        v = vals(qt)
        a(f'v_add_f32 v{S+qt}, v{v[0]}, v{v[1]}')
        for x in v[2:]: a(f'v_add_f32 v{S+qt}, v{S+qt}, v{x}')
    xreduce(S, 25, 'v_add_f32')
    for qt in range(3): a(f'v_rcp_f32 v{S+qt}, v{S+qt}')
    for qt in range(3):
        for x in vals(qt): a(f'v_mul_f32 v{x}, v{x}, v{S+qt}')
    for qt in range(3):
        for kt in range(3):
            s = SA+(kt*3+qt)*4
            a(f'v_cvt_pk_bf16_f32 v{PP+qt*8+kt*2}, v{s}, v{s+1}')
            a(f'v_cvt_pk_bf16_f32 v{PP+qt*8+kt*2+1}, v{s+2}, v{s+3}')
    a('s_waitcnt lgkmcnt(0)')
    for tt in range(6):
        for qt in range(3):
            o = OA+(tt*3+qt)*4
            a(f'v_mfma_f32_16x16x32_bf16 {vr(o,4)}, {vr(VF+tt*6,4)}, {vr(PP+qt*8,4)}, 0')
    for tt in range(6):
        for qt in range(3):
            o = OA+(tt*3+qt)*4
            a(f'v_mfma_f32_16x16x16_bf16 {vr(o,4)}, {vr(VF+tt*6+4,2)}, {vr(PP+qt*8+4,2)}, {vr(o,4)}')
    T.stamp()
    a('s_mul_i32 s36, s26, 576')
    a('s_mul_i32 s37, s20, 6')
    a('s_add_u32 s36, s36, s37')
    a('s_mul_i32 s37, s25, 3')
    a('s_add_u32 s36, s36, s37')
    a('s_lshl_b32 s36, s36, 10')
    a('v_lshlrev_b32 v16, 4, v0')
    for qt in range(3):
        for f in range(3):
            q = OP + (qt*3+f)*4
            a0 = OA + ((2*f)*3+qt)*4; a1 = OA + ((2*f+1)*3+qt)*4
            a(f'v_cvt_pk_bf16_f32 v{q}, v{a0}, v{a0+1}')
            a(f'v_cvt_pk_bf16_f32 v{q+1}, v{a0+2}, v{a0+3}')
            a(f'v_cvt_pk_bf16_f32 v{q+2}, v{a1}, v{a1+1}')
            a(f'v_cvt_pk_bf16_f32 v{q+3}, v{a1+2}, v{a1+3}')
            a(f'buffer_store_dwordx4 {vr(q,4)}, v16, s[32:35], s36 offen offset:{f*1024}')
        if qt < 2: a(f's_add_u32 s36, s36, {192*1024}')
    T.stamp()
    if STAMPS:
        a('s_waitcnt vmcnt(0)')
        T.stamp()
    T.flush(23)
    a('s_endpgm')
    a.label('K1_LOADER')
    a('s_sub_u32 s23, s23, 4')
    srd(a, 28, 10, W_BYTES)
    srd(a, 32, 4, X_BYTES)
    srd(a, 48, 8, KV_BYTES)
    a('s_mul_i32 s24, s23, %d' % (16*12288))
    a('s_mul_i32 s25, s20, 384')
    a('s_add_u32 s24, s24, s25')
    for i in range(6):
        a(f'v_add_u32 v1, {64*i}, v0')
        a('v_mul_u32_u24 v2, 2731, v1')
        a('v_lshrrev_b32 v2, 16, v2')
        a('v_mul_u32_u24 v3, 24, v2')
        a('v_sub_u32 v3, v1, v3')
        a('v_bfe_u32 v4, v2, 1, 1')
        a('v_bfe_u32 v5, v2, 3, 1')
        a('v_lshl_or_b32 v4, v5, 1, v4')
        a('v_lshlrev_b32 v4, 1, v4')
        a('v_xor_b32 v3, v3, v4')
        a('v_mul_u32_u24 v2, 12288, v2')
        a('v_lshl_add_u32 v2, v3, 4, v2')
        a(f'v_add_u32 v{8+i}, s24, v2')
        if i & 3: a(f'v_subrev_u32 v{8+i}, {(i&3)*1024}, v{8+i}')
    a('s_mul_i32 s24, s21, 96')
    a('s_mul_i32 s25, s23, 24')
    a('s_add_u32 s24, s24, s25')
    a('v_lshrrev_b32 v1, 3, v0')
    a('v_and_b32 v2, 7, v0')
    for i in range(3):
        a(f'v_add_u32 v3, {8*i}, v1')
        a('v_add_u32 v3, s25, v3')
        a('v_bfe_u32 v4, v3, 1, 3')
        a('v_xor_b32 v4, v4, v2')
        a(f'v_add_u32 v3, {8*i}, v1')
        a('v_add_u32 v3, s24, v3')
        a('v_mul_u32_u24 v3, 1280, v3')
        a(f'v_lshl_add_u32 v{14+i}, v4, 4, v3')
        if i: a(f'v_subrev_u32 v{14+i}, {i*1024}, v{14+i}')
    a('s_and_b32 s24, s23, 1')
    a('s_lshl_b32 s25, s21, 1')
    a('s_add_u32 s25, s25, s24')
    a('s_lshl_b32 s25, s25, 5')
    a('s_add_u32 s25, s25, s20')
    a('s_mul_i32 s25, s25, 18432')
    a('s_lshr_b32 s24, s23, 1')
    a('s_mul_i32 s24, s24, 192')
    a('s_add_u32 s26, s25, s24')
    for i in range(9):
        a(f'v_add_u32 v1, {64*i}, v0')
        a('v_mul_u32_u24 v2, 5462, v1')
        a('v_lshrrev_b32 v2, 16, v2')
        a('v_mul_u32_u24 v3, 12, v2')
        a('v_sub_u32 v3, v1, v3')
        a('v_bfe_u32 v4, v2, 2, 1')
        a('v_lshlrev_b32 v4, 1, v4')
        a('v_xor_b32 v3, v3, v4')
        a('v_mul_u32_u24 v2, 384, v2')
        a(f'v_lshl_add_u32 v{20+i}, v3, 4, v2')
        if i & 3: a(f'v_subrev_u32 v{20+i}, {(i&3)*1024}, v{20+i}')
    if OPT['rot']:
        a('s_and_b32 s40, s20, 3')
        a('s_mul_i32 s40, s40, 3')
        a('s_add_u32 s40, s40, s21')
        a('s_lshr_b32 s41, s20, 2')
        a('s_add_u32 s40, s40, s41')
        for _ in range(2):
            a('s_sub_u32 s41, s40, 10')
            a('s_cmp_ge_u32 s40, 10')
            a('s_cselect_b32 s40, s41, s40')
        a('s_lshl_b32 s41, s40, 7')
        a(f's_mul_i32 s40, s40, {64*12288}')
    else:
        a('s_mov_b32 s40, 0')
        a('s_mov_b32 s41, 0')
    a('s_mul_i32 s43, s23, 6144')
    a('s_mul_i32 s44, s23, 3072')
    a(f's_add_u32 s44, s44, {XOFF}')
    a('s_mov_b32 s42, 0')
    def issue():
        a('s_add_u32 m0, s42, s43')
        for i in range(6):
            if i == 4: a('s_add_u32 m0, m0, 4096')
            a(f'buffer_load_dwordx4 v{8+i}, s[28:31], s40 offen offset:{(i&3)*1024}{NT("ntw")} lds')
        a('s_add_u32 m0, s42, s44')
        for i in range(3):
            a(f'buffer_load_dwordx4 v{14+i}, s[32:35], s41 offen offset:{i*1024} lds')
        a(f's_add_u32 s40, s40, {64*12288}')
        a('s_add_u32 s41, s41, 128')
        a('s_cmp_eq_u32 s41, 1280')
        a('s_cselect_b32 s40, 0, s40')
        a('s_cselect_b32 s41, 0, s41')
        a(f's_add_u32 s42, s42, {ST}')
        a(f's_cmp_eq_u32 s42, {NS*ST}')
        a('s_cselect_b32 s42, 0, s42')
    a('s_mov_b32 s38, 0')
    TL.stamp()
    issue(); issue()
    TL.stamp()
    a('s_waitcnt vmcnt(9)')
    TL.stamp()
    a('s_barrier')
    issue(); issue()
    a('s_mov_b32 s38, 0')
    a.label('K1_LLOOP')
    a('s_waitcnt vmcnt(18)')
    a('s_barrier')
    issue()
    a('s_add_u32 s38, s38, 1')
    a(f's_cmp_lt_u32 s38, {NSTG-NS}')
    a('s_cbranch_scc1 K1_LLOOP')
    a('s_waitcnt vmcnt(18)')
    a('s_barrier')
    a('s_mul_i32 s45, s23, 9216')
    a(f's_add_u32 m0, s45, {2*ST}')
    for i in range(9):
        if i and (i & 3) == 0: a('s_add_u32 m0, m0, 4096')
        a(f'buffer_load_dwordx4 v{20+i}, s[48:51], s26 offen offset:{(i&3)*1024}{NT("ntkv")} lds')
    a('s_waitcnt vmcnt(18)')
    a('s_barrier')
    a('s_waitcnt vmcnt(9)')
    a('s_barrier')
    a('s_barrier')
    TL.stamp()
    a('s_waitcnt vmcnt(0)')
    TL.stamp()
    a('s_barrier')
    TL.flush(23, 4)
    a.label('K1_END')
    a('s_endpgm')
    return a.finalize()

def k2():
    a = Asm()
    ST = 32768; NS = 4; NSTG = 12
    XOFF = 20480
    ACC = 32; FA0 = 96; FA1 = 116; FB0 = 136; FB1 = 148
    a('s_cmp_ge_u32 s2, 256')
    a('s_cbranch_scc1 K2_END')
    T = Stamper(a, 1); T.stamp(); TL = T.fork()
    a('s_load_dwordx2 s[4:5], s[0:1], 32')
    a('s_load_dwordx2 s[12:13], s[0:1], 56')
    a('s_and_b32 s20, s2, 7')
    a('s_lshr_b32 s21, s2, 3')
    a('s_and_b32 s22, s21, 3')
    a('s_lshr_b32 s21, s21, 2')
    a('v_lshrrev_b32 v1, 6, v0')
    a('v_and_b32 v0, 63, v0')
    a('v_readfirstlane_b32 s23, v1')
    a('s_waitcnt lgkmcnt(0)')
    a('s_cmp_ge_u32 s23, 4')
    a('s_cbranch_scc1 K2_LOADER')
    a('s_and_b32 s24, s23, 1')
    a('s_lshr_b32 s25, s23, 1')
    srd(a, 32, 12, P_BYTES, WS_P)
    a('v_lshrrev_b32 v2, 4, v0')
    a('v_bfe_u32 v5, v0, 2, 2')
    a('v_and_b32 v6, 3, v0')
    a('v_lshl_add_u32 v7, v2, 2, v5')
    a('v_mul_u32_u24 v7, 320, v7')
    a('v_lshl_add_u32 v7, v6, 3, v7')
    a('v_and_b32 v12, 1, v2')
    a('s_mul_i32 s36, s25, 5')
    for u in range(2):
        a(f's_add_u32 s37, s36, {u}')
        a('v_xor_b32 v13, s37, v12')
        a(f'v_lshl_add_u32 v{8+u}, v13, 5, v7')
    a('s_mul_i32 s36, s24, 6144')
    a(f's_add_u32 s36, s36, {XOFF}')
    a('v_lshlrev_b32 v14, 4, v0')
    a('v_add_u32 v14, s36, v14')
    for i in range(60): a(f'v_mov_b32 v{ACC+i}, 0')
    def reads(FA, FB, ks):
        r = []
        for qt in range(3):
            r.append(f'ds_read_b128 {vr(FB+qt*4,4)}, v14 offset:{qt*2048+ks*1024}')
        for tt in range(5):
            for jh in range(2):
                r.append(f'ds_read_b64_tr_b16 {vr(FA+tt*4+jh*2,2)}, v{8+(tt&1)} offset:{ks*32*320+jh*16*320+(tt>>1)*64}')
        return r
    a('s_mov_b32 s38, 0')
    a(f's_mov_b32 s41, {ST}')
    T.stamp()
    a('s_barrier')
    T.stamp()
    for r in reads(FA0, FB0, 0): a(r)
    a('s_waitcnt lgkmcnt(0)')
    a.label('K2_LOOP')
    gemm_phase(a, 5, ACC, FA0, FB0, reads(FA1, FB1, 1))
    a('s_add_u32 s38, s38, 1')
    a('s_and_b32 s39, s38, 3')
    a('s_cmp_eq_u32 s39, 0')
    a(f's_cselect_b32 s39, {-(NS-1)*ST & 0xffffffff}, s41')
    a('s_waitcnt lgkmcnt(0)')
    for r in (8,9,14): a(f'v_add_u32 v{r}, s39, v{r}')
    a('s_barrier')
    gemm_phase(a, 5, ACC, FA1, FB1, reads(FA0, FB0, 0))
    a('s_waitcnt lgkmcnt(0)')
    a(f's_cmp_lt_u32 s38, {NSTG}')
    a('s_cbranch_scc1 K2_LOOP')
    T.stamp()
    a('s_mul_i32 s36, s20, 48')
    a('s_mul_i32 s37, s21, 6')
    a('s_add_u32 s36, s36, s37')
    a('s_mul_i32 s37, s24, 3')
    a('s_add_u32 s36, s36, s37')
    a('s_mul_i32 s36, s36, 40')
    a('s_mul_i32 s37, s22, 10')
    a('s_add_u32 s36, s36, s37')
    a('s_mul_i32 s37, s25, 5')
    a('s_add_u32 s36, s36, s37')
    a('s_lshl_b32 s36, s36, 10')
    a('v_lshlrev_b32 v16, 4, v0')
    a('v_add_u32 v17, 4096, v16')
    for qt in range(3):
        for tt in range(5):
            acc = ACC+(tt*3+qt)*4
            a(f'buffer_store_dwordx4 {vr(acc,4)}, v{16+(tt>>2)}, s[32:35], s36 offen offset:{(tt&3)*1024}')
        if qt < 2: a(f's_add_u32 s36, s36, {40*1024}')
    T.stamp()
    if STAMPS:
        a('s_waitcnt vmcnt(0)')
        T.stamp()
    T.flush(23)
    a('s_endpgm')
    a.label('K2_LOADER')
    a('s_sub_u32 s23, s23, 4')
    srd(a, 28, 4, W_BYTES)
    srd(a, 32, 12, O_BYTES, WS_O)
    a('s_mul_i32 s24, s20, 768')
    a('s_lshl_b32 s25, s23, 4')
    a('s_add_u32 s24, s24, s25')
    a('s_mul_i32 s24, s24, 1280')
    a('s_mul_i32 s25, s22, 320')
    a('s_add_u32 s24, s24, s25')
    for i in range(5):
        a(f'v_add_u32 v1, {64*i}, v0')
        a('v_mul_u32_u24 v2, 3277, v1')
        a('v_lshrrev_b32 v2, 16, v2')
        a('v_mul_u32_u24 v3, 20, v2')
        a('v_sub_u32 v3, v1, v3')
        a('v_bfe_u32 v4, v2, 2, 1')
        a('v_lshlrev_b32 v4, 1, v4')
        a('v_xor_b32 v3, v3, v4')
        a('v_mul_u32_u24 v2, 1280, v2')
        a('v_lshl_add_u32 v2, v3, 4, v2')
        a(f'v_add_u32 v{8+i}, s24, v2')
        if i & 3: a(f'v_subrev_u32 v{8+i}, {(i&3)*1024}, v{8+i}')
    a('v_lshlrev_b32 v1, 4, v0')
    a('s_mul_i32 s24, s23, 3')
    for i in range(3):
        a(f's_add_u32 s25, s24, {i}')
        a('s_lshr_b32 s26, s25, 1')
        a('s_and_b32 s25, s25, 1')
        a('s_mul_i32 s27, s21, 6')
        a('s_add_u32 s26, s26, s27')
        a('s_mul_i32 s26, s26, 192')
        a('s_add_u32 s26, s26, s25')
        a('s_mul_i32 s27, s20, 24')
        a('s_add_u32 s26, s26, s27')
        a('s_lshl_b32 s26, s26, 10')
        if i: a(f's_sub_u32 s26, s26, {i*1024}')
        a(f'v_add_u32 v{14+i}, s26, v1')
    if OPT['rot']:
        a('s_mul_i32 s40, s22, 3')
        a('s_add_u32 s40, s40, s21')
        a('s_sub_u32 s41, s40, 12')
        a('s_cmp_ge_u32 s40, 12')
        a('s_cselect_b32 s40, s41, s40')
        a('s_lshl_b32 s41, s40, 11')
        a(f's_mul_i32 s40, s40, {64*1280}')
    else:
        a('s_mov_b32 s40, 0')
        a('s_mov_b32 s41, 0')
    a('s_mul_i32 s43, s23, 5120')
    a('s_mul_i32 s44, s23, 3072')
    a(f's_add_u32 s44, s44, {XOFF}')
    a('s_mov_b32 s42, 0')
    def issue():
        a('s_add_u32 m0, s42, s43')
        for i in range(5):
            if i == 4: a('s_add_u32 m0, m0, 4096')
            a(f'buffer_load_dwordx4 v{8+i}, s[28:31], s40 offen offset:{(i&3)*1024}{NT("ntw")} lds')
        a('s_add_u32 m0, s42, s44')
        for i in range(3):
            a(f'buffer_load_dwordx4 v{14+i}, s[32:35], s41 offen offset:{i*1024}{NT("nto")} lds')
        a(f's_add_u32 s40, s40, {64*1280}')
        a('s_add_u32 s41, s41, 2048')
        a(f's_cmp_eq_u32 s41, {12*2048}')
        a('s_cselect_b32 s40, 0, s40')
        a('s_cselect_b32 s41, 0, s41')
        a(f's_add_u32 s42, s42, {ST}')
        a(f's_cmp_eq_u32 s42, {NS*ST}')
        a('s_cselect_b32 s42, 0, s42')
    a('s_mov_b32 s38, 0')
    TL.stamp()
    issue(); issue()
    TL.stamp()
    a('s_waitcnt vmcnt(8)')
    TL.stamp()
    a('s_barrier')
    issue(); issue()
    a('s_mov_b32 s38, 0')
    a.label('K2_LLOOP')
    a('s_waitcnt vmcnt(16)')
    a('s_barrier')
    issue()
    a('s_add_u32 s38, s38, 1')
    a(f's_cmp_lt_u32 s38, {NSTG-NS}')
    a('s_cbranch_scc1 K2_LLOOP')
    a('s_waitcnt vmcnt(16)')
    a('s_barrier')
    a('s_waitcnt vmcnt(8)')
    a('s_barrier')
    a('s_waitcnt vmcnt(0)')
    a('s_barrier')
    a('s_barrier')
    TL.flush(23, 4)
    a.label('K2_END')
    a('s_endpgm')
    return a.finalize()

def k3():
    a = Asm()
    a('s_cmp_ge_u32 s2, 480')
    a('s_cbranch_scc1 K3_END')
    T = Stamper(a, 2); T.stamp()
    a('s_load_dwordx2 s[4:5], s[0:1], 40')
    a('s_load_dwordx2 s[12:13], s[0:1], 56')
    a('v_lshrrev_b32 v1, 6, v0')
    a('v_and_b32 v0, 63, v0')
    a('v_readfirstlane_b32 s23, v1')
    a('s_lshl_b32 s20, s2, 2')
    a('s_add_u32 s20, s20, s23')
    a('s_waitcnt lgkmcnt(0)')
    srd(a, 28, 12, P_BYTES, WS_P)
    srd(a, 32, 4, OUT_BYTES)
    a('v_lshlrev_b32 v2, 4, v0')
    a('s_lshl_b32 s21, s20, 10')
    for s in range(8):
        a(f'buffer_load_dwordx4 {vr(8+s*4,4)}, v2, s[28:31], s21 offen')
        if s < 7: a(f's_add_u32 s21, s21, {1920*1024}')
    a('s_mul_i32 s22, s20, 1639')
    a('s_lshr_b32 s22, s22, 16')
    a('s_mul_i32 s24, s22, 40')
    a('s_sub_u32 s24, s20, s24')
    a('s_mul_i32 s22, s22, %d' % (16*1280))
    a('s_lshl_b32 s24, s24, 5')
    a('s_add_u32 s22, s22, s24')
    a('v_and_b32 v3, 15, v0')
    a('v_mul_u32_u24 v3, 1280, v3')
    a('v_lshrrev_b32 v4, 4, v0')
    a('v_lshl_add_u32 v3, v4, 3, v3')
    for s in range(1, 8):
        a(f's_waitcnt vmcnt({7-s})')
        for r in range(4): a(f'v_add_f32 v{8+r}, v{8+r}, v{8+s*4+r}')
    a('v_cvt_pk_bf16_f32 v4, v8, v9')
    a('v_cvt_pk_bf16_f32 v5, v10, v11')
    T.stamp()
    a('buffer_store_dwordx2 v[4:5], v3, s[32:35], s22 offen')
    if STAMPS:
        a('s_waitcnt vmcnt(0)')
        T.stamp()
    T.flush(23)
    a.label('K3_END')
    a('s_endpgm')
    return a.finalize()

def kd(name, vgpr, sgpr=64):
    if STAMPS: sgpr = 100
    acc = (vgpr + 3)//4*4
    return f""".amdhsa_kernel {name}
  .amdhsa_next_free_vgpr {vgpr}
  .amdhsa_next_free_sgpr {sgpr}
  .amdhsa_accum_offset {acc}
  .amdhsa_group_segment_fixed_size 0
  .amdhsa_kernarg_size 64
  .amdhsa_user_sgpr_count 2
  .amdhsa_user_sgpr_kernarg_segment_ptr 1
  .amdhsa_system_sgpr_workgroup_id_x 1
.end_amdhsa_kernel
"""

def main(out):
    assert all((p*2731)>>16 == p//24 for p in range(384))
    assert all((p*5462)>>16 == p//12 for p in range(576))
    assert all((p*3277)>>16 == p//20 for p in range(320))
    assert all((p*1639)>>16 == p//40 for p in range(1920))
    hdr = open('cdna_kernels/%s.s.ref' % NAME).read().split('; Override')[0]
    s = hdr
    s += '; @launch kernel=mha_k1_kernel grid=(256,1,1) block=(512,1,1) lds=147456\n'
    s += '; @launch kernel=mha_k2_kernel grid=(256,1,1) block=(512,1,1) lds=131072\n'
    s += '; @launch kernel=mha_k3_kernel grid=(480,1,1) block=(256,1,1) lds=0\n'
    s += '.amdgcn_target "amdgcn-amd-amdhsa--gfx950"\n.text\n'
    for nm, body in (('mha_k1_kernel', k1()), ('mha_k2_kernel', k2()), ('mha_k3_kernel', k3())):
        s += f'.globl {nm}\n.p2align 8\n.type {nm},@function\n{nm}:\n' + body
    s += '.section .rodata,"a"\n'
    for nm, v in (('mha_k1_kernel', 224), ('mha_k2_kernel', 160), ('mha_k3_kernel', 40)):
        s += '.p2align 6\n' + kd(nm, v)
    open(out, 'w').write(s)

if __name__ == '__main__':
    if '--stamps' in sys.argv:
        STAMPS = True; sys.argv.remove('--stamps')
    for x in list(sys.argv):
        if x.startswith('--opt='):
            for kv in x[6:].split(','):
                k, v = kv.split(':'); OPT[k] = int(v)
            sys.argv.remove(x)
    if '--loopstamp' in sys.argv:
        LOOPSTAMP = True; sys.argv.remove('--loopstamp')
    main(sys.argv[1] if len(sys.argv) > 1 else 'cdna_kernels/%s.s' % NAME)
```

```python
def kd(name, v=16):
    return f'''.p2align 6
.amdhsa_kernel {name}
  .amdhsa_next_free_vgpr {v}
  .amdhsa_next_free_sgpr 32
  .amdhsa_accum_offset {v}
  .amdhsa_group_segment_fixed_size 0
  .amdhsa_kernarg_size 64
  .amdhsa_user_sgpr_count 2
  .amdhsa_user_sgpr_kernarg_segment_ptr 1
  .amdhsa_system_sgpr_workgroup_id_x 1
.end_amdhsa_kernel
'''
def kern(name, body):
    return f'.globl {name}\n.p2align 8\n.type {name},@function\n{name}:\n{body}    s_endpgm\n'
def chase(argoff, nbytes, stride, n, tag, start=0):
    return f'''    s_cmp_ge_u32 s2, 1
    s_cbranch_scc1 PC_E{tag}
    s_load_dwordx2 s[4:5], s[0:1], {argoff}
    s_waitcnt lgkmcnt(0)
    s_mov_b32 s8, s4
    s_mov_b32 s9, s5
    s_mov_b32 s10, {nbytes}
    s_mov_b32 s11, 0x00020000
    v_mov_b32 v1, {start}
    s_mov_b32 s12, {n}
PC_L{tag}:
    buffer_load_dword v2, v1, s[8:11], 0 offen
    s_waitcnt vmcnt(0)
    v_and_b32 v2, 0, v2
    v_add_u32 v1, v1, v2
    v_add_u32 v1, {stride}, v1
    s_sub_u32 s12, s12, 1
    s_cmp_lg_u32 s12, 0
    s_cbranch_scc1 PC_L{tag}
PC_E{tag}:
'''
src = open('v1.s').read()
L1 = '; @launch kernel=mha_k1_kernel grid=(256,1,1) block=(512,1,1) lds=147456\n'
L2 = '; @launch kernel=mha_k2_kernel grid=(256,1,1) block=(512,1,1) lds=131072\n'
L3 = '; @launch kernel=mha_k3_kernel grid=(480,1,1) block=(256,1,1) lds=0\n'
base = L1+L2+L3
def mk(name, kname, body, grid, front, block=64, lds=0, v=16):
    LP = f'; @launch kernel={kname} grid=({grid},1,1) block=({block},1,1) lds={lds}\n'
    s = src.replace(base, LP+base if front else base+LP)
    s = s.replace('.section .rodata,"a"\n', kern(kname, body) + '.section .rodata,"a"\n') + kd(kname, v)
    open('variants/%s.s' % name, 'w').write(s)
if __name__ == '__main__':
    mk('q_k256_f', 'pc_kernel', chase(8, 9437184, 256, 64, 'k', 1<<20), 1, True)
    mk('q_k4k_f', 'pc_kernel', chase(8, 9437184, 4096+128, 64, 'k', 1<<20), 1, True)
    mk('q_w256_f', 'pc_kernel', chase(56, 268435456, 256, 64, 'w', 100<<20), 1, True)
    mk('q_w256_e', 'pc_kernel', chase(56, 268435456, 256, 64, 'w', 100<<20), 1, False)
    mk('q_wend256_f', 'pc_kernel', chase(56, 268435456, 256, 64, 'w', 250<<20), 1, True)
    mk('q_wo256_f', 'pc_kernel', chase(32, 7864320, 256, 64, 'w', 3<<20), 1, True)

def storek(off, kb, pol=''):
    s = f'''    s_cmp_ge_u32 s2, 256
    s_cbranch_scc1 PS_E
    s_load_dwordx2 s[4:5], s[0:1], 56
    s_waitcnt lgkmcnt(0)
    s_mov_b32 s8, s4
    s_mov_b32 s9, s5
    s_mov_b32 s10, 268435456
    s_mov_b32 s11, 0x00020000
    v_lshlrev_b32 v1, 4, v0
    s_mul_i32 s12, s2, {kb*1024}
    s_add_u32 s12, s12, {off}
    v_mov_b32 v4, 0
    v_mov_b32 v5, 0
    v_mov_b32 v6, 0
    v_mov_b32 v7, 0
'''
    for i in range(kb//4):
        s += f'    buffer_store_dwordx4 v[4:7], v1, s[8:11], s12 offen{pol}\n    s_add_u32 s12, s12, 4096\n'
    s += 'PS_E:\n'
    return s
def readk(argoff, nbytes, off, kb, pol=''):
    s = f'''    s_cmp_ge_u32 s2, 256
    s_cbranch_scc1 PR_E
    s_load_dwordx2 s[4:5], s[0:1], {argoff}
    s_waitcnt lgkmcnt(0)
    s_mov_b32 s8, s4
    s_mov_b32 s9, s5
    s_mov_b32 s10, {nbytes}
    s_mov_b32 s11, 0x00020000
    v_lshlrev_b32 v1, 4, v0
    s_mul_i32 s12, s2, {kb*1024}
    s_add_u32 s12, s12, {off}
'''
    for i in range(kb//4):
        s += f'    buffer_load_dwordx4 v[4:7], v1, s[8:11], s12 offen{pol}\n    s_add_u32 s12, s12, 4096\n'
    s += '    s_waitcnt vmcnt(0)\nPR_E:\n'
    return s
if __name__ == '__main__':
    mk('s_e', 'ps_kernel', storek(100<<20, 64), 256, False, block=256)
    mk('s_f', 'ps_kernel', storek(100<<20, 64), 256, True, block=256)
    mk('r_e', 'pr_kernel', readk(56, 268435456, 100<<20, 128), 256, False, block=256)
    mk('rnt_e', 'pr_kernel', readk(56, 268435456, 100<<20, 128, ' nt'), 256, False, block=256)
    mk('r_f', 'pr_kernel', readk(56, 268435456, 100<<20, 128), 256, True, block=256)
```
